```python
import torch

def _softmax(x, axis=-1):
    return torch.softmax(x, dim=axis)
def _gelu(x):
    return torch.nn.functional.gelu(x, approximate="tanh")
def _silu(x):
    return torch.nn.functional.silu(x)
def _sigmoid(x):
    return torch.sigmoid(x)
def _layernorm(x, axis=-1, eps=1e-5):
    m = x.mean(dim=axis, keepdim=True)
    v = x.var(dim=axis, keepdim=True, unbiased=False)
    return (x - m) / torch.sqrt(v + eps)
def _scatter_add(tgt, idx, src, axis=0):
    return tgt.clone().index_add_(axis, idx, src)
def _segment_sum(src, seg, n):
    out = torch.zeros((n,) + src.shape[1:], dtype=src.dtype)
    return out.index_add_(0, seg, src)
def _pad(x, pw):
    flat = tuple(v for pair in reversed(pw) for v in pair)
    return torch.nn.functional.pad(x, flat)

kernel_name = 'standalone__gqa_block_cached__sampling'

def setup_inputs():

    _w = (lambda a: (lambda t: t.to(torch.bfloat16) if t.is_floating_point() else t)(torch.as_tensor(a)))
    B, Sq, D = 32, 4, 1024
    Hq, Hkv, Sk, Dh = 32, 4, 2048, 128
    assert Hq % Hkv == 0, (Hq, Hkv)
    return {
        "x": _w((lambda *s: torch.randn(*s, dtype=torch.bfloat16) * 0.8)(B, Sq, D)),
        "k_cache": _w((lambda *s: torch.randn(*s, dtype=torch.bfloat16) * 0.8)(B, Hkv, Sk, Dh)),
        "v_cache": _w((lambda *s: torch.randn(*s, dtype=torch.bfloat16) * 0.05)(B, Hkv, Sk, Dh)),
        "wq": _w((lambda *s: torch.randn(*s, dtype=torch.bfloat16) * 0.8)(D, Hq * Dh) * (D ** -0.5)),
        "wo": _w((lambda *s: torch.randn(*s, dtype=torch.bfloat16) * 0.05)(Hq * Dh, D) * ((Hq * Dh) ** -0.5)),
    }

def reference(x, k_cache, v_cache, wq, wo):
    B, Sq, D = x.shape
    Hq, Dh = 32, 128
    Hkv = k_cache.shape[1]
    rep = Hq // Hkv
    q = (lambda x, *d: x.permute(*d))((x @ wq).reshape(B, Sq, Hq, Dh), 0, 2, 1, 3)
    k = (lambda x, n, axis: torch.repeat_interleave(x, n, dim=axis))(k_cache, rep, axis=1)
    v = (lambda x, n, axis: torch.repeat_interleave(x, n, dim=axis))(v_cache, rep, axis=1)
    scores = torch.einsum("bhqd,bhkd->bhqk", q, k) * (Dh ** -0.5)
    p = _softmax(scores, axis=-1)
    o = torch.einsum("bhqk,bhkd->bhqd", p, v)
    return (lambda x, *d: x.permute(*d))(o, 0, 2, 1, 3).reshape(B, Sq, Hq * Dh) @ wo
```

```python
import re

REG_RE = re.compile(r'^(-|abs\(|-abs\()?([vas])(\d+)\)?$')
RANGE_RE = re.compile(r'^(-)?([vas])\[(\d+):(\d+)\]$')

def regs_of(op):
    op = op.strip()
    m = REG_RE.match(op)
    if m:
        return {(m.group(2), int(m.group(3)))}
    m = RANGE_RE.match(op)
    if m:
        return {(m.group(2), i) for i in range(int(m.group(3)), int(m.group(4)) + 1)}
    if op in ('vcc',):
        return {('vcc', 0)}
    if op in ('vcc_lo', 'vcc_hi'):
        return {('vcc', 0)}
    if op in ('exec', 'exec_lo', 'exec_hi'):
        return {('exec', 0)}
    if op == 'm0':
        return {('m0', 0)}
    if op == 'scc':
        return {('scc', 0)}
    return set()

def split_ops(s):
    out, depth, cur = [], 0, ''
    for ch in s:
        if ch in '[(':
            depth += 1
        if ch in '])':
            depth -= 1
        if ch == ',' and depth == 0:
            out.append(cur.strip()); cur = ''
        else:
            cur += ch
    if cur.strip():
        out.append(cur.strip())
    return out

TRANS = ('v_exp_f32', 'v_log_f32', 'v_rcp_f32', 'v_rsq_f32', 'v_sqrt_f32', 'v_sin_f32', 'v_cos_f32')

def mfma_passes(mn):
    if '32x32x16' in mn or '32x32x8' in mn:
        return 8
    if '16x16x32' in mn or '16x16x16' in mn:
        return 4
    raise ValueError(mn)

class Ins:
    pass

def classify(text):
    t = text.split(';')[0].strip()
    parts = t.split(None, 1)
    mn = parts[0]
    rest = parts[1] if len(parts) > 1 else ''
    ops = split_ops(rest)
    mods = []
    if ops:
        last = ops[-1].split()
        ops[-1] = last[0]
        mods = last[1:]
    I = Ins()
    I.mn, I.ops, I.mods, I.text = mn, ops, mods, text
    I.w, I.r = set(), set()
    I.kind = 'other'
    I.srcC = set(); I.srcAB = set()
    I.store_data = set()
    R = lambda i: regs_of(ops[i]) if i < len(ops) else set()
    if mn.startswith('buffer_load'):
        I.kind = 'vmem'
        if 'lds' in mods:
            I.r |= R(0) | R(1) | R(2) | {('m0', 0)}
            I.lds_dma = True
        else:
            I.w |= R(0); I.r |= R(1) | R(2) | R(3)
    elif mn.startswith('global_load_lds'):
        I.kind = 'vmem'; I.r |= R(0) | R(1) | {('m0', 0)}; I.lds_dma = True
    elif mn.startswith('global_load'):
        I.kind = 'vmem'; I.w |= R(0); I.r |= R(1) | R(2)
    elif mn.startswith('buffer_store'):
        I.kind = 'vmem'; I.r |= R(0) | R(1) | R(2) | R(3)
        I.store_data = R(0)
    elif mn.startswith('global_store'):
        I.kind = 'vmem'; I.r |= R(0) | R(1) | R(2)
        I.store_data = R(1)
    elif mn.startswith('buffer_atomic'):
        I.kind = 'vmem'; I.r |= R(0) | R(1) | R(2) | R(3)
        if 'sc0' in mods:
            I.w |= R(0)
    elif mn.startswith('global_atomic'):
        I.kind = 'vmem'
        if 'sc0' in mods:
            I.w |= R(0); I.r |= R(1) | R(2) | R(3)
        else:
            I.r |= R(0) | R(1) | R(2)
    elif mn in ('buffer_wbl2', 'buffer_inv'):
        I.kind = 'vmem'
    elif mn.startswith('ds_read') or mn.startswith('ds_bpermute') or mn.startswith('ds_permute') or mn.startswith('ds_swizzle'):
        I.kind = 'ds'; I.w |= R(0); I.r |= R(1) | R(2)
    elif mn.startswith('ds_write') or mn.startswith('ds_add') or mn.startswith('ds_max') :
        I.kind = 'ds'
        if '_rtn' in mn:
            I.w |= R(0); I.r |= R(1) | R(2)
        else:
            I.r |= R(0) | R(1) | R(2)
    elif mn.startswith('s_load') or mn.startswith('s_buffer_load') or mn.startswith('s_memtime') or mn.startswith('s_memrealtime'):
        I.kind = 'smem'; I.w |= R(0); I.r |= R(1) | R(2)
    elif mn.startswith('v_mfma'):
        I.kind = 'mfma'; I.w |= R(0); I.srcAB = R(1) | R(2); I.srcC = R(3); I.r |= I.srcAB | I.srcC
        I.passes = mfma_passes(mn)
    elif mn.startswith('v_'):
        I.kind = 'valu'
        base = re.sub(r'_(e32|e64|dpp|sdwa)$', '', mn)
        I.base = base
        if base.startswith('v_cmpx'):
            I.w |= R(0) | {('exec', 0)}; I.r |= R(1) | R(2)
        elif base.startswith('v_cmp'):
            I.w |= R(0); I.r |= R(1) | R(2)
        elif base in ('v_add_co_u32', 'v_sub_co_u32', 'v_subrev_co_u32'):
            I.w |= R(0) | R(1); I.r |= R(2) | R(3)
        elif base in ('v_addc_co_u32', 'v_subb_co_u32'):
            I.w |= R(0) | R(1); I.r |= R(2) | R(3) | R(4)
        elif base.startswith('v_permlane') and 'swap' in base:
            I.w |= R(0) | R(1); I.r |= R(0) | R(1)
        elif base in ('v_fmac_f32', 'v_pk_fmac_f16', 'v_dot2c_f32_bf16', 'v_writelane_b32'):
            I.w |= R(0); I.r |= R(0) | R(1) | R(2)
        elif base == 'v_nop':
            pass
        else:
            I.w |= R(0)
            for i in range(1, len(ops)):
                I.r |= R(i)
        I.dpp = mn.endswith('_dpp') or any(m.startswith(('quad_perm', 'row_', 'wave_')) for m in mods)
        if I.dpp:
            I.r |= R(0)
        I.trans = base in TRANS
    elif mn.startswith('s_'):
        I.kind = 'salu'
        if mn in ('s_waitcnt', 's_nop', 's_barrier', 's_endpgm', 's_sleep', 's_setprio', 's_branch') or mn.startswith('s_cbranch'):
            I.kind = 'ctl'
        elif mn.startswith('s_cmp') or mn.startswith('s_bitcmp'):
            I.r |= R(0) | R(1)
        elif 'saveexec' in mn:
            I.w |= R(0) | {('exec', 0)}; I.r |= R(1) | {('exec', 0)}
        else:
            I.w |= R(0)
            for i in range(1, len(ops)):
                I.r |= R(i)
    else:
        raise ValueError('unknown instr ' + text)
    return I

def isv(rs):
    return {r for r in rs if r[0] in ('v', 'a')}
def iss(rs):
    return {r for r in rs if r[0] in ('s', 'vcc')}

class Asm:
    def __init__(self):
        self.lines = []
        self.hist = []
        self.pos = 0
        self.vm = []
        self.lgkm = []
        self.smem = set()
        self.auto = True
        self.nnops = 0
        self.maxv = -1; self.maxs = -1; self.maxa = -1

    def raw(self, text):
        self.lines.append(text)

    def comment(self, text):
        self.lines.append('    ; ' + text)

    def label(self, name, reset=True):
        self.lines.append(name + ':')
        if reset:
            self.hist = []

    def _nop(self, n):
        while n > 0:
            k = min(n, 16)
            self.lines.append('    s_nop %d' % (k - 1))
            self.pos += k
            self.nnops += 1
            n -= k

    def wait_vm(self, n):
        if len(self.vm) > n:
            self.lines.append('    s_waitcnt vmcnt(%d)' % min(n, 63))
            self.pos += 1
            self.vm = self.vm[len(self.vm) - n:] if n > 0 else []

    def wait_lgkm(self, n):
        if self.smem:
            n = 0
        if len(self.lgkm) > n or (n == 0 and self.smem):
            self.lines.append('    s_waitcnt lgkmcnt(%d)' % min(n, 15))
            self.pos += 1
            self.lgkm = self.lgkm[len(self.lgkm) - n:] if n > 0 else []
            if n == 0:
                self.smem = set()

    def force_wait(self, vm=None, lgkm=None):
        s = []
        if vm is not None:
            s.append('vmcnt(%d)' % vm)
            self.vm = self.vm[len(self.vm) - vm:] if vm > 0 else []
        if lgkm is not None:
            s.append('lgkmcnt(%d)' % lgkm)
            self.lgkm = self.lgkm[len(self.lgkm) - lgkm:] if lgkm > 0 else []
            if lgkm == 0:
                self.smem = set()
        self.lines.append('    s_waitcnt ' + ' '.join(s))
        self.pos += 1

    def wait_tag(self, tag):
        idx = -1
        for i, o in enumerate(self.vm):
            if o.get('tag') == tag:
                idx = i
        if idx >= 0:
            self.wait_vm(len(self.vm) - 1 - idx)

    def __call__(self, text, tag=None):
        for line in text.strip().split('\n'):
            line = line.strip()
            if not line or line.startswith(';'):
                if line:
                    self.lines.append('    ' + line)
                continue
            self.emit(line, tag)

    def emit(self, text, tag=None):
        I = classify(text)
        for (c, i) in I.w | I.r:
            if c == 'v': self.maxv = max(self.maxv, i)
            if c == 's': self.maxs = max(self.maxs, i)
            if c == 'a': self.maxa = max(self.maxa, i)
        touched = I.w | I.r
        if self.auto:
            idx = -1
            for i, o in enumerate(self.vm):
                if o['w'] & touched:
                    idx = i
            if idx >= 0:
                n = len(self.vm) - 1 - idx
                if n > 63:
                    n = 63
                self.wait_vm(n)
            idx = -1
            for i, o in enumerate(self.lgkm):
                if o['w'] & touched:
                    idx = i
            if idx >= 0:
                n = len(self.lgkm) - 1 - idx
                self.wait_lgkm(min(n, 15))
            if self.smem & touched:
                self.wait_lgkm(0)
            if I.kind == 'vmem' and len(self.vm) >= 63:
                self.wait_vm(62)
            if I.kind == 'ds' and len(self.lgkm) >= 15 and False:
                self.wait_lgkm(14)
            need = 0
            for (P, ppos) in self.hist:
                dist = self.pos - ppos - 1
                req = self.hazard(P, I)
                if req > dist:
                    need = max(need, req - dist)
            if need:
                self._nop(need)
        if I.mn == 's_nop':
            self.lines.append('    ' + text)
            self.pos += int(I.ops[0], 0) + 1
            return
        if I.mn == 's_waitcnt':
            raise ValueError('use force_wait')
        self.lines.append('    ' + text)
        self.hist.append((I, self.pos))
        self.pos += 1
        self.hist = [(P, p) for (P, p) in self.hist if self.pos - p < 24]
        if I.kind == 'vmem':
            self.vm.append({'w': set(I.w), 'tag': tag})
        elif I.kind == 'ds':
            self.lgkm.append({'w': set(I.w), 'tag': tag})
        elif I.kind == 'smem':
            self.smem |= I.w

    @staticmethod
    def hazard(P, I):
        req = 0
        Pv, Iv_r, Iv_w = isv(P.w), isv(I.r), isv(I.w)
        if P.kind == 'valu':
            Ps = iss(P.w)
            if I.kind == 'mfma' and (Pv & Iv_r):
                req = max(req, 2)
            if I.kind == 'mfma' and ('exec', 0) in P.w:
                req = max(req, 4)
            if I.kind == 'vmem' and (Ps & iss(I.r)):
                req = max(req, 5)
            if I.kind == 'valu':
                if I.dpp and (Pv & Iv_r):
                    req = max(req, 2)
                if I.dpp and ('exec', 0) in P.w:
                    req = max(req, 5)
                if Ps & iss(I.r):
                    req = max(req, 2)
                    if I.base in ('v_readlane_b32', 'v_writelane_b32', 'v_div_fmas_f32'):
                        req = max(req, 4)
                if I.base in ('v_readlane_b32', 'v_readfirstlane_b32') and (Pv & Iv_r):
                    req = max(req, 1)
                if I.base in ('v_readlane_b32', 'v_readfirstlane_b32', 'v_writelane_b32') and ('exec', 0) in P.w:
                    req = max(req, 4)
                if I.base.startswith('v_permlane'):
                    if Pv & Iv_r:
                        req = max(req, 2)
                    if ('exec', 0) in P.w:
                        req = max(req, 4)
                if P.trans and not I.trans and (Pv & Iv_r):
                    req = max(req, 1)
                if any(m.startswith('op_sel') or m.startswith('dst_sel') for m in P.mods) and (Pv & (Iv_r | Iv_w)):
                    req = max(req, 1)
            if I.kind in ('salu', 'ctl') and (Ps & iss(I.r)):
                req = max(req, 1)
            if I.kind == 'ctl' and I.mn in ('s_cbranch_vccz', 's_cbranch_vccnz') and ('vcc', 0) in P.w:
                req = max(req, 1)
        if P.kind == 'salu':
            if ('m0', 0) in P.w and getattr(I, 'lds_dma', False):
                req = max(req, 1)
        if P.kind == 'vmem' and P.store_data and len(P.store_data) >= 3:
            if P.store_data & Iv_w:
                req = max(req, 2 if I.kind == 'valu' else 1)
        if P.kind == 'mfma':
            p = P.passes
            tab_ab = {2: 5, 4: 8, 8: 12, 16: 20}[p]
            tab_c_ov = {2: 4, 4: 6, 8: 10, 16: 18}[p]
            tab_war = {2: 1, 4: 3, 8: 7, 16: 15}[p]
            if I.kind == 'mfma':
                if Pv & I.srcAB:
                    req = max(req, tab_ab)
                if Pv & I.srcC:
                    if not (I.srcC == Pv and I.passes == p):
                        req = max(req, tab_c_ov)
                    elif p == 2:
                        req = max(req, 2)
                elif Pv & Iv_w:
                    req = max(req, tab_c_ov)
            elif I.kind in ('valu', 'vmem', 'ds'):
                if Pv & (Iv_r | Iv_w):
                    req = max(req, tab_ab)
                if I.kind == 'valu' and (P.srcC & Iv_w):
                    req = max(req, tab_war)
        return req

    def text(self):
        return '\n'.join(self.lines) + '\n'

def vr(a, n=1):
    return 'v%d' % a if n == 1 else 'v[%d:%d]' % (a, a + n - 1)
def sr(a, n=1):
    return 's%d' % a if n == 1 else 's[%d:%d]' % (a, a + n - 1)
def ar(a, n=1):
    return 'a%d' % a if n == 1 else 'a[%d:%d]' % (a, a + n - 1)

def kernel_desc(name, vgpr, sgpr, agpr=0):
    acc = (vgpr + 3) // 4 * 4
    nfv = acc + agpr if agpr else vgpr
    return f""".amdhsa_kernel {name}
  .amdhsa_next_free_vgpr {nfv}
  .amdhsa_next_free_sgpr {sgpr}
  .amdhsa_accum_offset {acc}
  .amdhsa_group_segment_fixed_size 0
  .amdhsa_kernarg_size 64
  .amdhsa_user_sgpr_count 2
  .amdhsa_user_sgpr_kernarg_segment_ptr 1
  .amdhsa_system_sgpr_workgroup_id_x 1
  .amdhsa_float_denorm_mode_32 3
  .amdhsa_float_denorm_mode_16_64 3
.end_amdhsa_kernel
"""
```

```python
import sys, math, struct
sys.path.insert(0, 'gen')
from asmdsl import *

def f32bits(x):
    return struct.unpack('<I', struct.pack('<f', x))[0]

WS_Q = 0
WS_OP = 1 << 20
WS_LSE = 5 << 20
WS_O = 6 << 20
WS_SIZE = 268435456
SEL_LO, SEL_HI = 0x05040100, 0x07060302

def srd(a, d, src, size):
    a(f's_mov_b32 s{d}, s{src}')
    a(f's_and_b32 s{d+1}, s{src+1}, 0xffff')
    a(f's_mov_b32 s{d+2}, {size:#x}')
    a(f's_mov_b32 s{d+3}, 0x20000')

def header(a, name):
    a.raw('.p2align 8')
    a.raw(f'.type {name},@function')
    a.raw(f'{name}:')

def k1_qproj(name):
    a = Asm(); header(a, name)
    a('s_cmp_ge_u32 s2, 256')
    a(f's_cbranch_scc1 {name}_end')
    a('s_load_dwordx2 s[4:5], s[0:1], 0')
    a('s_load_dwordx2 s[6:7], s[0:1], 24')
    a('s_load_dwordx2 s[8:9], s[0:1], 56')
    a('v_lshrrev_b32 v1, 6, v0')
    a('v_readfirstlane_b32 s24, v1')
    a('v_and_b32 v1, 63, v0')
    a('v_and_b32 v5, 15, v0')
    a('v_bfe_u32 v6, v0, 4, 2')
    a('s_and_b32 s25, s2, 7')
    a('s_lshl_b32 s25, s25, 3')
    a('s_bfe_u32 s26, s2, 0x30003')
    a('s_add_u32 s25, s25, s26')
    a('s_lshr_b32 s26, s2, 6')
    a('s_lshl_b32 s27, s24, 21')
    a('s_lshl_b32 s28, s25, 7')
    a('s_add_u32 s27, s27, s28')
    a('v_lshlrev_b32 v2, 16, v6')
    a('v_lshl_add_u32 v2, v5, 3, v2')
    a('v_add_u32 v2, s27, v2')
    a('s_lshl_b32 s27, s26, 16')
    a('s_lshl_b32 s28, s24, 9')
    a('s_add_u32 s27, s27, s28')
    a('v_lshlrev_b32 v3, 11, v5')
    a('v_lshl_add_u32 v3, v6, 4, v3')
    a('v_add_u32 v3, s27, v3')
    a('v_add_u32 v4, 0x8000, v3')
    a(f's_mov_b32 s30, {SEL_LO:#x}')
    a(f's_mov_b32 s31, {SEL_HI:#x}')
    srd(a, 12, 4, 128*1024*2)
    srd(a, 16, 6, 1024*4096*2)
    srd(a, 20, 8, WS_SIZE)
    WQ = lambda kb, r: 64 + (kb*8 + r)*2
    X = lambda kb, mh: 192 + (kb*2 + mh)*4
    ACC = lambda mh, j: 16 + (mh*4 + j)*4
    for kb in range(8):
        for mh in range(2):
            a(f'buffer_load_dwordx4 {vr(X(kb,mh),4)}, v{3+mh}, s[12:15], 0 offen offset:{kb*64}')
        for r in range(8):
            a(f's_mov_b32 s32, {(kb*32 + r)*8192:#x}')
            a(f'buffer_load_dwordx2 {vr(WQ(kb,r),2)}, v2, s[16:19], s32 offen')
    for kb in range(8):
        for j in range(4):
            for p in range(4):
                a(f'v_perm_b32 v{48+4*j+p}, v{WQ(kb,2*p+1)+(j>>1)}, v{WQ(kb,2*p)+(j>>1)}, s{30+(j&1)}')
        for j in range(4):
            for mh in range(2):
                c = '0' if kb == 0 else vr(ACC(mh,j),4)
                a(f'v_mfma_f32_16x16x32_bf16 {vr(ACC(mh,j),4)}, {vr(48+4*j,4)}, {vr(X(kb,mh),4)}, {c}')
    a('s_lshl_b32 s27, s24, 13')
    a('v_lshlrev_b32 v7, 4, v1')
    a('v_add_u32 v8, s27, v7')
    for mh in range(2):
        for j in range(4):
            a(f'ds_write_b128 v8, {vr(ACC(mh,j),4)} offset:{(mh*4+j)*1024}')
    a.force_wait(lgkm=0)
    a('s_barrier')
    a('s_lshr_b32 s27, s24, 1')
    a('s_and_b32 s28, s24, 1')
    a('s_lshl_b32 s29, s27, 12')
    a('s_lshl_b32 s33, s28, 3')
    a('s_add_u32 s29, s29, s33')
    a('v_add_u32 v8, s29, v7')
    for ww in range(4):
        for j in range(4):
            a(f'ds_read_b64 {vr(64+(ww*4+j)*2,2)}, v8 offset:{ww*8192 + j*1024}')
    for j in range(4):
        for rr in range(2):
            R = lambda ww: 64 + (ww*4+j)*2 + rr
            a(f'v_add_f32 v{R(0)}, v{R(0)}, v{R(1)}')
            a(f'v_add_f32 v{R(2)}, v{R(2)}, v{R(3)}')
            a(f'v_add_f32 v{R(0)}, v{R(0)}, v{R(2)}')
    val = lambda j, rr: 64 + j*2 + rr
    a(f'v_cvt_pk_bf16_f32 v16, v{val(0,0)}, v{val(1,0)}')
    a(f'v_cvt_pk_bf16_f32 v17, v{val(2,0)}, v{val(3,0)}')
    a(f'v_cvt_pk_bf16_f32 v18, v{val(0,1)}, v{val(1,1)}')
    a(f'v_cvt_pk_bf16_f32 v19, v{val(2,1)}, v{val(3,1)}')
    a('s_lshl_b32 s29, s26, 3')
    a('s_lshl_b32 s33, s27, 2')
    a('s_add_u32 s29, s29, s33')
    a('s_lshl_b32 s29, s29, 15')
    a('s_lshl_b32 s33, s25, 9')
    a('s_add_u32 s29, s29, s33')
    a('s_lshl_b32 s33, s28, 8')
    a('s_add_u32 s29, s29, s33')
    a('v_lshrrev_b32 v9, 2, v5')
    a('v_lshlrev_b32 v9, 15, v9')
    a('v_lshl_add_u32 v9, v6, 6, v9')
    a('v_and_b32 v10, 3, v0')
    a('v_lshl_add_u32 v9, v10, 4, v9')
    a(f'buffer_store_dwordx4 v[16:19], v9, s[20:23], s29 offen')
    a.label(f'{name}_end')
    a('s_endpgm')
    return a

def k2_attn(name, nt=''):
    a = Asm(); header(a, name)
    a('s_cmp_ge_u32 s2, 256')
    a(f's_cbranch_scc1 {name}_end')
    a('s_load_dwordx4 s[4:7], s[0:1], 8')
    a('s_load_dwordx2 s[8:9], s[0:1], 56')
    a('v_lshrrev_b32 v1, 6, v0')
    a('v_readfirstlane_b32 s24, v1')
    a('v_and_b32 v1, 63, v0')
    a('v_and_b32 v5, 15, v0')
    a('v_bfe_u32 v6, v0, 4, 2')
    a('v_and_b32 v10, 3, v0')
    a('v_lshrrev_b32 v11, 2, v5')
    a('v_lshl_add_u32 v2, v10, 2, v11')
    a('v_lshlrev_b32 v2, 8, v2')
    a('v_lshl_add_u32 v2, v6, 5, v2')
    a('v_lshlrev_b32 v3, 4, v1')
    a('v_lshlrev_b32 v4, 10, v11')
    a('v_lshl_add_u32 v4, v6, 6, v4')
    a('v_lshl_add_u32 v4, v10, 4, v4')
    a('s_lshl_b32 s25, s2, 3')
    a('s_add_u32 s25, s25, s24')
    a('s_lshl_b32 s40, s25, 15')
    for j in range(1, 8):
        a(f's_add_u32 s{40+j}, s40, {j*4096}')
    a('s_lshr_b32 s26, s2, 1')
    a('s_lshl_b32 s26, s26, 13')
    a('s_add_u32 s27, s26, 4096')
    a(f's_mov_b32 s30, {SEL_LO:#x}')
    a(f's_mov_b32 s31, {SEL_HI:#x}')
    cs = 128 ** -0.5 * math.log2(math.e)
    a(f's_mov_b32 s32, {f32bits(cs):#x}')
    srd(a, 12, 4, 64 << 20)
    srd(a, 16, 6, 64 << 20)
    srd(a, 20, 8, WS_SIZE)
    Q = lambda hf, t: 16 + (hf*4 + t)*4
    S = lambda j, hf: 48 + (j*2 + hf)*4
    KV = 112
    for hf in range(2):
        for t in range(4):
            a(f'buffer_load_dwordx4 {vr(Q(hf,t),4)}, v4, s[20:23], s{26+hf} offen offset:{t*256}')
    for j in range(8):
        for t in range(4):
            a(f'buffer_load_dwordx4 {vr(KV+j*16+t*4,4)}, v2, s[12:15], s{40+j} offen offset:{(t>>1)*128+(t&1)*16}{nt}')
    for j in range(8):
        for t in range(4):
            for hf in range(2):
                c = '0' if t == 0 else vr(S(j,hf),4)
                a(f'v_mfma_f32_16x16x32_bf16 {vr(S(j,hf),4)}, {vr(KV+j*16+t*4,4)}, {vr(Q(hf,t),4)}, {c}')
        for r in range(4):
            a(f'buffer_load_dwordx4 {vr(KV+j*16+r*4,4)}, v3, s[16:19], s{40+j} offen offset:{r*1024}{nt}')
    M = lambda hf: 240 + hf
    L = lambda hf: 242 + hf
    T = 244
    for hf in range(2):
        regs = [S(j,hf)+r for j in range(8) for r in range(4)]
        a(f'v_max3_f32 v{M(hf)}, v{regs[0]}, v{regs[1]}, v{regs[2]}')
        k = 3
        while k + 1 < len(regs):
            a(f'v_max3_f32 v{M(hf)}, v{M(hf)}, v{regs[k]}, v{regs[k+1]}'); k += 2
        if k < len(regs):
            a(f'v_max_f32 v{M(hf)}, v{M(hf)}, v{regs[k]}')
    for op in ('v_permlane16_swap_b32', 'v_permlane32_swap_b32'):
        for hf in range(2):
            a(f'v_mov_b32 v{T+hf}, v{M(hf)}')
        for hf in range(2):
            a(f'{op} v{M(hf)}, v{T+hf}')
        for hf in range(2):
            a(f'v_max_f32 v{M(hf)}, v{M(hf)}, v{T+hf}')
    for hf in range(2):
        a(f'v_mul_f32 v{M(hf)}, s32, v{M(hf)}')
    for j in range(8):
        for hf in range(2):
            for r in range(4):
                a(f'v_fma_f32 v{S(j,hf)+r}, v{S(j,hf)+r}, s32, -v{M(hf)}')
            for r in range(4):
                a(f'v_exp_f32 v{S(j,hf)+r}, v{S(j,hf)+r}')
    P = lambda blk, hf: 16 + (blk*2 + hf)*4
    for hf in range(2):
        for j in range(8):
            r0 = S(j,hf)
            if j == 0:
                a(f'v_add_f32 v{L(hf)}, v{r0}, v{r0+1}')
            else:
                a(f'v_add_f32 v{L(hf)}, v{L(hf)}, v{r0}')
                a(f'v_add_f32 v{L(hf)}, v{L(hf)}, v{r0+1}')
            a(f'v_add_f32 v{L(hf)}, v{L(hf)}, v{r0+2}')
            a(f'v_add_f32 v{L(hf)}, v{L(hf)}, v{r0+3}')
            a(f'v_cvt_pk_bf16_f32 v{P(j>>1,hf)+(j&1)*2}, v{r0}, v{r0+1}')
            a(f'v_cvt_pk_bf16_f32 v{P(j>>1,hf)+(j&1)*2+1}, v{r0+2}, v{r0+3}')
    for op in ('v_permlane16_swap_b32', 'v_permlane32_swap_b32'):
        for hf in range(2):
            a(f'v_mov_b32 v{T+hf}, v{L(hf)}')
        for hf in range(2):
            a(f'{op} v{L(hf)}, v{T+hf}')
        for hf in range(2):
            a(f'v_add_f32 v{L(hf)}, v{L(hf)}, v{T+hf}')
    STATS = 131072
    a(f'v_lshlrev_b32 v7, 3, v5')
    a(f'v_add_u32 v7, {STATS:#x}, v7')
    a('s_lshl_b32 s33, s24, 8')
    a('v_add_u32 v8, s33, v7')
    for hf in range(2):
        a(f'v_mov_b32 v{T+2}, v{M(hf)}')
        a(f'v_mov_b32 v{T+3}, v{L(hf)}')
        a(f'ds_write_b64 v8, {vr(T+2,2)} offset:{hf*128}')
    a.force_wait(lgkm=0)
    a('s_barrier')
    ST = lambda ww, hf: 48 + (ww*2 + hf)*2
    for ww in range(8):
        for hf in range(2):
            a(f'ds_read_b64 {vr(ST(ww,hf),2)}, v7 offset:{ww*256 + hf*128}')
    F = lambda hf: 12 + hf
    MS = lambda hf: 14 + hf
    for hf in range(2):
        a(f'v_max3_f32 v{MS(hf)}, v{ST(0,hf)}, v{ST(1,hf)}, v{ST(2,hf)}')
        a(f'v_max3_f32 v{MS(hf)}, v{MS(hf)}, v{ST(3,hf)}, v{ST(4,hf)}')
        a(f'v_max3_f32 v{MS(hf)}, v{MS(hf)}, v{ST(5,hf)}, v{ST(6,hf)}')
        a(f'v_max_f32 v{MS(hf)}, v{MS(hf)}, v{ST(7,hf)}')
        for ww in range(8):
            a(f'v_sub_f32 v{ST(ww,hf)}, v{ST(ww,hf)}, v{MS(hf)}')
        for ww in range(8):
            a(f'v_exp_f32 v{ST(ww,hf)}, v{ST(ww,hf)}')
        a(f'v_mul_f32 v{T}, v{ST(0,hf)}, v{ST(0,hf)+1}')
        for ww in range(1, 8):
            a(f'v_fma_f32 v{T}, v{ST(ww,hf)}, v{ST(ww,hf)+1}, v{T}')
        a(f'v_sub_f32 v{T+1}, v{M(hf)}, v{MS(hf)}')
        a(f'v_exp_f32 v{T+1}, v{T+1}')
        a(f'v_rcp_f32 v{T+2}, v{T}')
        a(f'v_log_f32 v{T+3}, v{T}')
        a(f'v_mul_f32 v{F(hf)}, v{T+1}, v{T+2}')
        a(f'v_add_f32 v{MS(hf)}, v{MS(hf)}, v{T+3}')
    ACC = lambda j, hf: 48 + (j*2 + hf)*4
    for blk in range(4):
        R = lambda r: KV + blk*32 + r*4
        for jh in range(2):
            for jj in range(4):
                j = jh*4 + jj
                for p in range(4):
                    a(f'v_perm_b32 v{240+4*jj+p}, v{R(2*p+1)+(j>>1)}, v{R(2*p)+(j>>1)}, s{30+(j&1)}')
            for jj in range(4):
                j = jh*4 + jj
                for hf in range(2):
                    c = '0' if blk == 0 else vr(ACC(j,hf),4)
                    a(f'v_mfma_f32_16x16x32_bf16 {vr(ACC(j,hf),4)}, {vr(240+4*jj,4)}, {vr(P(blk,hf),4)}, {c}')
    a('s_lshl_b32 s33, s24, 14')
    a('v_add_u32 v8, s33, v3')
    for hf in range(2):
        for rp in range(4):
            for jh in range(2):
                qi = (hf*4 + rp)*2 + jh
                for jj in range(4):
                    a(f'v_mul_f32 v{KV+qi*4+jj}, v{ACC(jh*4+jj,hf)+rp}, v{F(hf)}')
                a(f'ds_write_b128 v8, {vr(KV+qi*4,4)} offset:{qi*1024}')
    a.force_wait(lgkm=0)
    a('s_barrier')
    a('s_lshl_b32 s33, s24, 11')
    a('v_add_u32 v8, s33, v3')
    a('v_add_u32 v9, 0x10000, v8')
    for ww in range(8):
        for jh in range(2):
            a(f'ds_read_b128 {vr(48+(ww*2+jh)*4,4)}, v{8+(ww>>2)} offset:{(ww&3)*16384 + jh*1024}')
    for step in (1, 2, 4):
        for ww in range(0, 8, 2*step):
            for k in range(8):
                a(f'v_add_f32 v{48+ww*8+k}, v{48+ww*8+k}, v{48+(ww+step)*8+k}')
    a('s_lshl_b32 s34, s2, 14')
    a('s_add_u32 s34, s34, s33')
    a(f's_add_u32 s34, s34, {WS_OP:#x}')
    a('buffer_store_dwordx4 v[48:51], v3, s[20:23], s34 offen')
    a('buffer_store_dwordx4 v[52:55], v3, s[20:23], s34 offen offset:1024')
    a('s_lshl_b32 s34, s2, 7')
    a(f's_add_u32 s34, s34, {WS_LSE:#x}')
    a('v_lshlrev_b32 v7, 2, v5')
    a('buffer_store_dword v14, v7, s[20:23], s34 offen')
    a('buffer_store_dword v15, v7, s[20:23], s34 offen offset:64')
    a.label(f'{name}_end')
    a('s_endpgm')
    return a

def k2b_combine(name):
    a = Asm(); header(a, name)
    a('s_cmp_ge_u32 s2, 256')
    a(f's_cbranch_scc1 {name}_end')
    a('s_load_dwordx2 s[8:9], s[0:1], 56')
    a('v_lshrrev_b32 v1, 6, v0')
    a('v_readfirstlane_b32 s24, v1')
    a('v_and_b32 v1, 63, v0')
    a('v_and_b32 v5, 15, v0')
    a('v_bfe_u32 v6, v0, 4, 2')
    a('s_lshr_b32 s25, s2, 1')
    a('s_and_b32 s26, s2, 1')
    a('s_lshl_b32 s27, s26, 2')
    a('s_add_u32 s27, s27, s24')
    srd(a, 20, 8, WS_SIZE)
    a('s_lshl_b32 s28, s25, 15')
    a('s_lshl_b32 s29, s27, 11')
    a('s_add_u32 s28, s28, s29')
    a(f's_add_u32 s28, s28, {WS_OP:#x}')
    a('s_add_u32 s29, s28, 16384')
    a('v_lshlrev_b32 v3, 4, v1')
    a('buffer_load_dwordx4 v[16:19], v3, s[20:23], s28 offen')
    a('buffer_load_dwordx4 v[20:23], v3, s[20:23], s28 offen offset:1024')
    a('buffer_load_dwordx4 v[24:27], v3, s[20:23], s29 offen')
    a('buffer_load_dwordx4 v[28:31], v3, s[20:23], s29 offen offset:1024')
    a('s_lshl_b32 s30, s25, 8')
    a('s_lshl_b32 s31, s26, 6')
    a('s_add_u32 s30, s30, s31')
    a(f's_add_u32 s30, s30, {WS_LSE:#x}')
    a('v_lshlrev_b32 v7, 2, v5')
    a('buffer_load_dword v8, v7, s[20:23], s30 offen')
    a('buffer_load_dword v9, v7, s[20:23], s30 offen offset:128')
    a('v_max_f32 v10, v8, v9')
    a('v_sub_f32 v8, v8, v10')
    a('v_sub_f32 v9, v9, v10')
    a('v_exp_f32 v8, v8')
    a('v_exp_f32 v9, v9')
    a('v_add_f32 v10, v8, v9')
    a('v_rcp_f32 v10, v10')
    a('v_mul_f32 v8, v8, v10')
    a('v_mul_f32 v9, v9, v10')
    for k in range(8):
        a(f'v_mul_f32 v{16+k}, v{16+k}, v8')
        a(f'v_fma_f32 v{16+k}, v{24+k}, v9, v{16+k}')
    for k in range(4):
        a(f'v_cvt_pk_bf16_f32 v{32+k}, v{16+2*k}, v{17+2*k}')
    a('s_lshl_b32 s30, s25, 13')
    a('s_lshl_b32 s31, s26, 12')
    a('s_add_u32 s30, s30, s31')
    a('s_lshl_b32 s31, s24, 6')
    a('s_add_u32 s30, s30, s31')
    a(f's_add_u32 s30, s30, {WS_O:#x}')
    a('v_lshrrev_b32 v11, 2, v5')
    a('v_lshlrev_b32 v11, 10, v11')
    a('v_lshl_add_u32 v11, v6, 8, v11')
    a('v_and_b32 v12, 3, v0')
    a('v_lshl_add_u32 v11, v12, 4, v11')
    a('buffer_store_dwordx4 v[32:35], v11, s[20:23], s30 offen')
    a.label(f'{name}_end')
    a('s_endpgm')
    return a

def k3_oproj(name):
    a = Asm(); header(a, name)
    a('s_cmp_ge_u32 s2, 256')
    a(f's_cbranch_scc1 {name}_end')
    a('s_load_dwordx4 s[4:7], s[0:1], 32')
    a('s_load_dwordx2 s[8:9], s[0:1], 56')
    a('v_lshrrev_b32 v1, 6, v0')
    a('v_readfirstlane_b32 s24, v1')
    a('v_and_b32 v1, 63, v0')
    a('v_and_b32 v5, 15, v0')
    a('v_bfe_u32 v6, v0, 4, 2')
    a('s_and_b32 s25, s2, 7')
    a('s_lshl_b32 s25, s25, 2')
    a('s_bfe_u32 s26, s2, 0x20003')
    a('s_add_u32 s25, s25, s26')
    a('s_lshr_b32 s26, s2, 5')
    a('s_lshl_b32 s27, s26, 17')
    a('s_lshl_b32 s28, s24, 12')
    a('s_add_u32 s27, s27, s28')
    a(f's_add_u32 s27, s27, {WS_O:#x}')
    a('v_lshrrev_b32 v3, 2, v5')
    a('v_lshlrev_b32 v3, 15, v3')
    a('v_lshl_add_u32 v3, v6, 6, v3')
    a('v_and_b32 v4, 3, v0')
    a('v_lshl_add_u32 v3, v4, 4, v3')
    a('v_add_u32 v3, s27, v3')
    a('s_lshl_b32 s27, s24, 20')
    a('s_lshl_b32 s28, s25, 6')
    a('s_add_u32 s27, s27, s28')
    a('v_lshlrev_b32 v2, 14, v6')
    a('v_lshl_add_u32 v2, v5, 2, v2')
    a('v_add_u32 v2, s27, v2')
    a(f's_mov_b32 s30, {SEL_LO:#x}')
    a(f's_mov_b32 s31, {SEL_HI:#x}')
    srd(a, 12, 4, 4096*1024*2)
    srd(a, 16, 6, 128*1024*2)
    srd(a, 20, 8, WS_SIZE)
    WO = lambda kb, r: 64 + kb*8 + r
    O = lambda kb: 192 + kb*4
    def load(kb):
        a(f'buffer_load_dwordx4 {vr(O(kb),4)}, v3, s[20:23], 0 offen offset:{kb*256}')
        for r in range(8):
            if r % 2 == 0:
                a(f's_mov_b32 s32, {kb*65536 + (r>>1)*4096:#x}')
            a(f'buffer_load_dword v{WO(kb,r)}, v2, s[12:15], s32 offen offset:{(r&1)*2048}')
    def comp(kb):
        for j in range(2):
            for p in range(4):
                a(f'v_perm_b32 v{48+8*(kb&1)+4*j+p}, v{WO(kb,2*p+1)}, v{WO(kb,2*p)}, s{30+j}')
        for j in range(2):
            c = '0' if kb == 0 else vr(16+4*j,4)
            a(f'v_mfma_f32_16x16x32_bf16 {vr(16+4*j,4)}, {vr(48+8*(kb&1)+4*j,4)}, {vr(O(kb),4)}, {c}')
    for kb in range(7):
        load(kb)
    for kb in range(16):
        comp(kb)
        if kb + 7 < 16:
            load(kb + 7)
    a('s_lshl_b32 s27, s24, 11')
    a('v_lshlrev_b32 v7, 4, v1')
    a('v_add_u32 v8, s27, v7')
    a('ds_write_b128 v8, v[16:19]')
    a('ds_write_b128 v8, v[20:23] offset:1024')
    a.force_wait(lgkm=0)
    a('s_barrier')
    a('s_cmp_lg_u32 s24, 0')
    a(f's_cbranch_scc1 {name}_end')
    for ww in range(8):
        for j in range(2):
            a(f'ds_read_b128 {vr(64+ww*8+j*4,4)}, v7 offset:{ww*2048+j*1024}')
    for step in (1, 2, 4):
        for ww in range(0, 8, 2*step):
            for k in range(8):
                a(f'v_add_f32 v{64+ww*8+k}, v{64+ww*8+k}, v{64+(ww+step)*8+k}')
    for r in range(4):
        a(f'v_cvt_pk_bf16_f32 v{16+r}, v{64+r}, v{68+r}')
    a('s_lshl_b32 s27, s26, 15')
    a('s_lshl_b32 s28, s25, 6')
    a('s_add_u32 s27, s27, s28')
    a('v_lshlrev_b32 v9, 11, v5')
    a('v_lshl_add_u32 v9, v6, 4, v9')
    a('buffer_store_dwordx4 v[16:19], v9, s[16:19], s27 offen')
    a.label(f'{name}_end')
    a('s_endpgm')
    return a

def build(path, nt=''):
    ks = [('qproj_kernel', k1_qproj, 256, 256, 32768, {}),
          ('attn_kernel', k2_attn, 256, 512, 131072 + 2048, {'nt': nt}),
          ('comb_kernel', k2b_combine, 256, 256, 0, {}),
          ('oproj_kernel', k3_oproj, 256, 512, 16384, {})]
    out = ['; generated by gen_v0.py']
    for (n, f, g, b, lds, kw) in ks:
        out.append(f'; @launch kernel={n} grid=({g},1,1) block=({b},1,1) lds={lds}')
    out.append('.amdgcn_target "amdgcn-amd-amdhsa--gfx950"')
    out.append('.text')
    descs = []
    for (n, f, g, b, lds, kw) in ks:
        a = f(n, **kw)
        out.append(f'.globl {n}')
        out.append(a.text())
        descs.append(kernel_desc(n, a.maxv + 1, a.maxs + 1))
        print(n, 'vgpr', a.maxv + 1, 'sgpr', a.maxs + 1, 'lines', len(a.lines), 'nops', a.nnops)
    out.append('.section .rodata,"a"')
    for d in descs:
        out.append('.p2align 6')
        out.append(d)
    open(path, 'w').write('\n'.join(out))

if __name__ == '__main__':
    build('standalone__gqa_block_cached__sampling.s')
    build('v0_nt.s', nt=' nt')
```
